```python
import torch

def _softmax(x, axis=-1):
    return torch.softmax(x, dim=axis)
def _gelu(x):
    return torch.nn.functional.gelu(x, approximate="tanh")
def _silu(x):
    return torch.nn.functional.silu(x)
def _sigmoid(x):
    return torch.sigmoid(x)
def _layernorm(x, axis=-1, eps=1e-5):
    m = x.mean(dim=axis, keepdim=True)
    v = x.var(dim=axis, keepdim=True, unbiased=False)
    return (x - m) / torch.sqrt(v + eps)
def _scatter_add(tgt, idx, src, axis=0):
    return tgt.clone().index_add_(axis, idx, src)
def _segment_sum(src, seg, n):
    out = torch.zeros((n,) + src.shape[1:], dtype=src.dtype)
    return out.index_add_(0, seg, src)
def _pad(x, pw):
    flat = tuple(v for pair in reversed(pw) for v in pair)
    return torch.nn.functional.pad(x, flat)

kernel_name = 'parallel_sum__sliding_block_cached__glu_gated_geglu__decode'

def setup_inputs():

    _w = (lambda a: (lambda t: t.to(torch.bfloat16) if t.is_floating_point() else t)(torch.as_tensor(a)))
    def _A_setup():
        B, Sq, D = 4, 1, 512
        Hq, Hkv, Sk, Dh = 32, 8, 4096, 128
        assert Hq % Hkv == 0, (Hq, Hkv)
        return {
            "x": _w((lambda *s: torch.randn(*s, dtype=torch.bfloat16) * 0.05)(B, Sq, D)),
            "k_cache": _w((lambda *s: torch.randn(*s, dtype=torch.bfloat16) * 1.6)(B, Hkv, Sk, Dh)),
            "v_cache": _w((lambda *s: torch.randn(*s, dtype=torch.bfloat16) * 0.8)(B, Hkv, Sk, Dh)),
            "wq": _w((lambda *s: torch.randn(*s, dtype=torch.bfloat16) * 1.6)(D, Hq * Dh) * (D ** -0.5)),
            "wo": _w((lambda *s: torch.randn(*s, dtype=torch.bfloat16) * 0.8)(Hq * Dh, D) * ((Hq * Dh) ** -0.5)),
        }
    _A_in = _A_setup()

    def _B_setup():
        B, S, Dm, Df = 4, 1, 512, 1792
        return {
            "x": _w((lambda *s: torch.randn(*s, dtype=torch.bfloat16) * 0.05)(B, S, Dm)),
            "w_gate": _w((lambda *s: torch.randn(*s, dtype=torch.bfloat16) * 0.8)(Dm, Df) * (Dm ** -0.5)),
            "w_up": _w((lambda *s: torch.randn(*s, dtype=torch.bfloat16) * 0.8)(Dm, Df) * (Dm ** -0.5)),
            "w_down": _w((lambda *s: torch.randn(*s, dtype=torch.bfloat16) * 0.8)(Df, Dm) * (Df ** -0.5)),
        }
    _B_in = _B_setup()

    return {
        "A_x": _A_in["x"],
        "A_k_cache": _A_in["k_cache"],
        "A_v_cache": _A_in["v_cache"],
        "A_wq": _A_in["wq"],
        "A_wo": _A_in["wo"],
        "B_x": _B_in["x"],
        "B_w_gate": _B_in["w_gate"],
        "B_w_up": _B_in["w_up"],
        "B_w_down": _B_in["w_down"],
    }

def reference(A_x, A_k_cache, A_v_cache, A_wq, A_wo, B_x, B_w_gate, B_w_up, B_w_down):
    def _A_ref(x, k_cache, v_cache, wq, wo):
        B, Sq, D = x.shape
        Hq, Dh = 32, 128
        Hkv, Sk = k_cache.shape[1], k_cache.shape[2]
        W = min(4096, max(256, Sk // 4))
        rep = Hq // Hkv
        q = (lambda x, *d: x.permute(*d))((x @ wq).reshape(B, Sq, Hq, Dh), 0, 2, 1, 3)
        k = (lambda x, n, axis: torch.repeat_interleave(x, n, dim=axis))(k_cache[:, :, Sk - W:, :], rep, axis=1)
        v = (lambda x, n, axis: torch.repeat_interleave(x, n, dim=axis))(v_cache[:, :, Sk - W:, :], rep, axis=1)
        scores = torch.einsum("bhqd,bhkd->bhqk", q, k) * (Dh ** -0.5)
        p = _softmax(scores, axis=-1)
        o = torch.einsum("bhqk,bhkd->bhqd", p, v)
        return (lambda x, *d: x.permute(*d))(o, 0, 2, 1, 3).reshape(B, Sq, Hq * Dh) @ wo

    def _B_ref(x, w_gate, w_up, w_down):
        g = torch.einsum("bsd,df->bsf", x, w_gate)
        u = torch.einsum("bsd,df->bsf", x, w_up)
        h = _gelu(g) * u
        return torch.einsum("bsf,fd->bsd", h, w_down)

    x = A_x
    xn = _layernorm(x, axis=-1)
    return x + _A_ref(xn, A_k_cache, A_v_cache, A_wq, A_wo) + _B_ref(xn, B_w_gate, B_w_up, B_w_down)
```

```python
NAME = "parallel_sum__sliding_block_cached__glu_gated_geglu__decode"
HDR = """; Kernarg layout (96 bytes, ptrs only, base s[0:1]):
"""
class Asm:
    def __init__(self):
        self.lines = []
        self.uid = 0
    def __call__(self, s=""):
        for l in s.split("\n"):
            self.lines.append(l)
    def label(self, base="L"):
        self.uid += 1
        return f"{base}_{self.uid}"
    def text(self):
        return "\n".join(self.lines) + "\n"

def kernel_begin(a, name):
    a(".text")
    a(f".globl {name}")
    a(".p2align 8")
    a(f".type {name},@function")
    a(f"{name}:")

def kernel_desc(a, name, vgpr=256, sgpr=102, accum=None, wgy=False):
    if accum is None:
        accum = min(256, (vgpr + 3) // 4 * 4)
    a('.section .rodata,"a"')
    a(".p2align 6")
    a(f".amdhsa_kernel {name}")
    a(f"  .amdhsa_next_free_vgpr {vgpr}")
    a(f"  .amdhsa_next_free_sgpr {sgpr}")
    a(f"  .amdhsa_accum_offset {accum}")
    a("  .amdhsa_group_segment_fixed_size 0")
    a("  .amdhsa_kernarg_size 96")
    a("  .amdhsa_user_sgpr_count 2")
    a("  .amdhsa_user_sgpr_kernarg_segment_ptr 1")
    a("  .amdhsa_system_sgpr_workgroup_id_x 1")
    a("  .amdhsa_float_denorm_mode_32 3")
    a(".end_amdhsa_kernel")
```

```python
import sys
from asmgen import *
out = sys.argv[1] if len(sys.argv) > 1 else "v1.s"
a = Asm()
a(HDR.rstrip())
a("; @launch kernel=k1_proj_kernel grid=(256,1,1) block=(128,1,1) lds=49152")
a("; @launch kernel=k2_attn_kernel grid=(256,1,1) block=(256,1,1) lds=16384")
a("; @launch kernel=k3_oproj_kernel grid=(256,1,1) block=(256,1,1) lds=16384")
a("; @launch kernel=k4_final_kernel grid=(64,1,1) block=(256,1,1) lds=0")
a('.amdgcn_target "amdgcn-amd-amdhsa--gfx950"')

WS_Q = 0
WS_H = 0x8000
WS_PART = 0x10000
WS_OP = 0x100000

def nop(n):
    while n > 0:
        k = min(n, 16)
        a(f"s_nop {k-1}")
        n -= k

def rne_bf16(dst, src):
    a(f"v_cvt_pk_bf16_f32 v{dst}, v{src}, v{src}")
    a(f"v_lshlrev_b32 v{dst}, 16, v{dst}")

def allreduce_rows(op, v, t):
    a(f"v_mov_b32 v{t}, v{v}")
    nop(2)
    a(f"v_permlane16_swap_b32 v{t}, v{v}")
    nop(1)
    a(f"{op} v{v}, v{v}, v{t}")
    a(f"v_mov_b32 v{t}, v{v}")
    nop(2)
    a(f"v_permlane32_swap_b32 v{t}, v{v}")
    nop(1)
    a(f"{op} v{v}, v{v}, v{t}")

def allreduce_banks(op, v):
    nop(2)
    a(f"{op}_dpp v{v}, v{v}, v{v} row_ror:4 row_mask:0xf bank_mask:0xf")
    nop(2)
    a(f"{op}_dpp v{v}, v{v}, v{v} row_ror:8 row_mask:0xf bank_mask:0xf")

def k1():
    name = "k1_proj_kernel"
    kernel_begin(a, name)
    a("s_cmp_ge_u32 s2, 256")
    a("s_cbranch_scc1 k1_done")
    a("s_load_dwordx2 s[4:5], s[0:1], 0")
    a("s_load_dwordx2 s[6:7], s[0:1], 24")
    a("s_load_dwordx4 s[8:11], s[0:1], 48")
    a("s_load_dwordx2 s[12:13], s[0:1], 88")
    LANE, T0, T1, T2, XOFF, WOFF, TRA = 1, 2, 3, 4, 5, 6, 7
    XB = 8
    AF = 40
    D0, D1 = 56, 60
    E0, E1 = 64, 68
    S1, S2, ONES, NEGM, RSTD = 72, 73, 74, 75, 76
    TT, CC = 80, 84
    UU = 88
    a(f"v_lshrrev_b32 v{T0}, 6, v0")
    a(f"v_and_b32 v{LANE}, 63, v0")
    a(f"v_readfirstlane_b32 s3, v{T0}")
    a("s_and_b32 s14, s2, 7")
    a("s_lshr_b32 s15, s2, 3")
    a("s_cmp_eq_u32 s3, 0")
    a("s_cbranch_scc1 k1_go")
    a("s_cmp_ge_u32 s15, 14")
    a("s_cbranch_scc1 k1_done")
    a("k1_go:")
    a(f"v_and_b32 v{T0}, 3, v{LANE}")
    a(f"v_lshlrev_b32 v{XOFF}, 10, v{T0}")
    a(f"v_bfe_u32 v{T0}, v{LANE}, 2, 1")
    a(f"v_lshl_add_u32 v{XOFF}, v{T0}, 9, v{XOFF}")
    a(f"v_lshrrev_b32 v{T0}, 4, v{LANE}")
    a(f"v_lshl_add_u32 v{XOFF}, v{T0}, 4, v{XOFF}")
    a(f"v_mov_b32 v{ONES}, 0x3f803f80")
    for i in range(32):
        a(f"v_mov_b32 v{XB+i}, v{ONES}")
    a(f"v_lshrrev_b32 v{T0}, 1, v{LANE}")
    a(f"v_bfe_u32 v{T1}, v{T0}, 2, 2")
    a(f"v_lshlrev_b32 v{T1}, 3, v{T1}")
    a(f"v_bfe_u32 v{T2}, v{T0}, 4, 1")
    a(f"v_lshl_add_u32 v{T1}, v{T2}, 2, v{T1}")
    a(f"v_and_b32 v{T0}, 3, v{T0}")
    a(f"v_add_u32 v{T1}, v{T1}, v{T0}")
    a(f"v_and_b32 v{T0}, 1, v{LANE}")
    a(f"v_lshlrev_b32 v{T0}, 4, v{T0}")
    a(f"v_lshlrev_b32 v{TRA}, 3, v{LANE}")
    a("s_waitcnt lgkmcnt(0)")
    a(f"v_and_b32 v{T2}, 8, v{LANE}")
    a(f"v_cmp_eq_u32 vcc, 0, v{T2}")
    a("s_and_saveexec_b64 s[16:17], vcc")
    for t in range(8):
        a(f"global_load_dwordx4 v[{XB+4*t}:{XB+4*t+3}], v{XOFF}, s[4:5] offset:{t*64}")
    a("s_mov_b64 exec, s[16:17]")
    a("s_cmp_eq_u32 s3, 0")
    a("s_cbranch_scc0 k1_ffn")
    a("s_mov_b32 s18, 8192")
    a(f"v_mul_lo_u32 v{WOFF}, v{T1}, s18")
    a(f"v_add_u32 v{WOFF}, v{WOFF}, v{T0}")
    a("s_lshl_b32 s19, s14, 10")
    a("s_lshl_b32 s20, s15, 5")
    a("s_add_u32 s19, s19, s20")
    a("s_add_u32 s6, s6, s19")
    a("s_addc_u32 s7, s7, 0")
    a("s_mov_b32 m0, 0")
    for t in range(16):
        nop(1)
        a(f"global_load_lds_dwordx4 v{WOFF}, s[6:7]")
        if t < 15:
            a("s_add_u32 s6, s6, 0x40000")
            a("s_addc_u32 s7, s7, 0")
            a("s_add_u32 m0, m0, 1024")
    a("s_branch k1_stats")
    a("k1_ffn:")
    a("s_mov_b32 s18, 3584")
    a(f"v_mul_lo_u32 v{WOFF}, v{T1}, s18")
    a(f"v_add_u32 v{WOFF}, v{WOFF}, v{T0}")
    a("s_mul_i32 s19, s14, 14")
    a("s_add_u32 s19, s19, s15")
    a("s_lshl_b32 s21, s19, 5")
    a("s_add_u32 s8, s8, s21"); a("s_addc_u32 s9, s9, 0")
    a("s_add_u32 s10, s10, s21"); a("s_addc_u32 s11, s11, 0")
    a("s_mov_b32 m0, 16384")
    for (lo, hi) in ((8, 9), (10, 11)):
        for t in range(16):
            nop(1)
            a(f"global_load_lds_dwordx4 v{WOFF}, s[{lo}:{hi}]")
            a(f"s_add_u32 s{lo}, s{lo}, {32*3584}")
            a(f"s_addc_u32 s{hi}, s{hi}, 0")
            a("s_add_u32 m0, m0, 1024")
    a("k1_stats:")
    a("s_waitcnt vmcnt(0)")
    a(f"v_mov_b32 v{S1}, 0")
    a(f"v_mov_b32 v{S2}, 0")
    for i in range(32):
        a(f"v_dot2c_f32_bf16 v{S1}, v{XB+i}, v{ONES}")
        a(f"v_dot2c_f32_bf16 v{S2}, v{XB+i}, v{XB+i}")
    nop(3)
    a(f"v_add_f32_dpp v{S1}, v{S1}, v{S1} row_shl:4 row_mask:0xf bank_mask:0x1")
    a(f"v_add_f32_dpp v{S2}, v{S2}, v{S2} row_shl:4 row_mask:0xf bank_mask:0x1")
    allreduce_rows("v_add_f32", S1, T0)
    allreduce_rows("v_add_f32", S2, T0)
    a(f"v_mul_f32 v{S1}, 0x3b000000, v{S1}")
    a(f"v_mul_f32 v{S2}, 0x3b000000, v{S2}")
    a(f"v_fma_f32 v{S2}, -v{S1}, v{S1}, v{S2}")
    a(f"v_max_f32 v{S2}, 0, v{S2}")
    rne_bf16(NEGM, S1)
    a(f"v_xor_b32 v{NEGM}, 0x80000000, v{NEGM}")
    rne_bf16(S2, S2)
    a(f"v_add_f32 v{S2}, 0x3727c5ac, v{S2}")
    rne_bf16(S2, S2)
    a(f"v_sqrt_f32 v{S2}, v{S2}")
    nop(1)
    rne_bf16(S2, S2)
    a(f"v_rcp_f32 v{RSTD}, v{S2}")
    nop(1)

    def gemv(ldsbase, d0, d1):
        for r in range(4):
            a(f"v_mov_b32 v{d0+r}, 0")
            a(f"v_mov_b32 v{d1+r}, 0")
        for grp in range(4):
            for s in range(4):
                t = grp * 4 + s
                for rho in range(2):
                    a(f"ds_read_b64_tr_b16 v[{AF+4*s+2*rho}:{AF+4*s+2*rho+1}], v{TRA} offset:{ldsbase + t*1024 + rho*512}")
            a("s_waitcnt lgkmcnt(0)")
            for s in range(4):
                t = grp * 4 + s
                jj0, tp = t >> 3, t & 7
                d = d0 if jj0 == 0 else d1
                a(f"v_mfma_f32_16x16x32_bf16 v[{d}:{d+3}], v[{AF+4*s}:{AF+4*s+3}], v[{XB+4*tp}:{XB+4*tp+3}], v[{d}:{d+3}]")
        nop(8)
    def finish(d0, d1, dst):
        for r in range(4):
            a(f"v_add_f32 v{CC+r}, v{d0+r}, v{d1+r}")
        for r in range(4):
            a(f"v_add_f32_dpp v{dst+r}, v{d1+r}, v{d0+r} row_shl:4 row_mask:0xf bank_mask:0xf")
        nop(2)
        for r in range(4):
            a(f"v_fmac_f32_dpp v{dst+r}, v{CC+r}, v{NEGM} row_shl:8 row_mask:0xf bank_mask:0xf")
        for r in range(4):
            a(f"v_mul_f32 v{dst+r}, v{dst+r}, v{RSTD}")
    a("s_cmp_eq_u32 s3, 0")
    a("s_cbranch_scc0 k1_ffn2")
    gemv(0, D0, D1)
    finish(D0, D1, TT)
    a(f"v_cvt_pk_bf16_f32 v{UU}, v{TT}, v{TT+1}")
    a(f"v_cvt_pk_bf16_f32 v{UU+1}, v{TT+2}, v{TT+3}")
    a(f"v_and_b32 v{T0}, 3, v{LANE}")
    a(f"v_lshlrev_b32 v{T0}, 13, v{T0}")
    a(f"v_lshrrev_b32 v{T1}, 4, v{LANE}")
    a(f"v_lshl_add_u32 v{T0}, v{T1}, 3, v{T0}")
    a(f"v_add_u32 v{T0}, s19, v{T0}")
    a("s_branch k1_store")
    a("k1_ffn2:")
    gemv(16384, D0, D1)
    gemv(32768, E0, E1)
    finish(D0, D1, TT)
    finish(E0, E1, UU)
    for r in range(4):
        g, u = TT + r, UU + r
        rne_bf16(g, g)
        rne_bf16(u, u)
        a(f"v_mul_f32 v{T0}, v{g}, v{g}")
        a(f"v_mov_b32 v{T1}, 0x3d372713")
        a(f"v_fma_f32 v{T0}, v{T0}, v{T1}, 1.0")
        a(f"v_mul_f32 v{T0}, v{T0}, v{g}")
        a(f"v_mul_f32 v{T0}, 0xc0135761, v{T0}")
        a(f"v_exp_f32 v{T0}, v{T0}")
        nop(1)
        a(f"v_add_f32 v{T0}, 1.0, v{T0}")
        a(f"v_rcp_f32 v{T0}, v{T0}")
        nop(1)
        a(f"v_mul_f32 v{g}, v{g}, v{T0}")
        rne_bf16(g, g)
        a(f"v_mul_f32 v{g}, v{g}, v{u}")
    a(f"v_cvt_pk_bf16_f32 v{UU}, v{TT}, v{TT+1}")
    a(f"v_cvt_pk_bf16_f32 v{UU+1}, v{TT+2}, v{TT+3}")
    a(f"v_and_b32 v{T0}, 3, v{LANE}")
    a("s_mov_b32 s18, 3584")
    a(f"v_mul_lo_u32 v{T0}, v{T0}, s18")
    a(f"v_lshrrev_b32 v{T1}, 4, v{LANE}")
    a(f"v_lshl_add_u32 v{T0}, v{T1}, 3, v{T0}")
    a(f"s_add_u32 s21, s21, {WS_H}")
    a(f"v_add_u32 v{T0}, s21, v{T0}")
    a("k1_store:")
    a(f"v_and_b32 v{T2}, 12, v{LANE}")
    a(f"v_cmp_eq_u32 vcc, 0, v{T2}")
    a("s_and_saveexec_b64 s[16:17], vcc")
    a(f"global_store_dwordx2 v{T0}, v[{UU}:{UU+1}], s[12:13]")
    a("k1_done:")
    a("s_endpgm")
    return name

SC = 0.08838834764831845 * 1.4426950408889634
import struct
def f2u(x): return struct.unpack("<I", struct.pack("<f", x))[0]
def k2():
    name = "k2_attn_kernel"
    kernel_begin(a, name)
    a("s_cmp_ge_u32 s2, 256")
    a("s_cbranch_scc1 k2_done")
    a("s_load_dwordx4 s[4:7], s[0:1], 8")
    a("s_load_dwordx2 s[12:13], s[0:1], 88")
    LANE, T0, T1, T2, KOFF, VOFF, QOFF = 1, 2, 3, 4, 5, 6, 7
    KR = 8
    VR = 40
    QB = 72
    DD = 76
    S0 = 108
    MX, LS, MC = 110, 111, 112
    PL, PH = 114, 116
    X0 = 118
    O0, O1 = 124, 128
    CSC = 132
    a(f"v_lshrrev_b32 v{T0}, 6, v0")
    a(f"v_and_b32 v{LANE}, 63, v0")
    a(f"v_readfirstlane_b32 s3, v{T0}")
    a("s_and_b32 s14, s2, 7")
    a("s_lshr_b32 s15, s2, 3")
    a("s_lshr_b32 s16, s15, 3")
    a("s_and_b32 s17, s15, 7")
    a("s_lshl_b32 s18, s16, 3")
    a("s_add_u32 s18, s18, s14")
    a("s_lshl_b32 s18, s18, 12")
    a("s_lshl_b32 s19, s17, 7")
    a("s_add_u32 s18, s18, s19")
    a("s_lshl_b32 s19, s3, 5")
    a("s_add_u32 s18, s18, s19")
    a("s_add_u32 s18, s18, 3072")
    a("s_lshl_b32 s18, s18, 8")
    a(f"v_bfe_u32 v{T0}, v{LANE}, 2, 2")
    a(f"v_lshlrev_b32 v{KOFF}, 8, v{T0}")
    a(f"v_lshrrev_b32 v{T0}, 4, v{LANE}")
    a(f"v_lshl_add_u32 v{KOFF}, v{T0}, 6, v{KOFF}")
    a(f"v_and_b32 v{T1}, 3, v{LANE}")
    a(f"v_lshl_add_u32 v{KOFF}, v{T1}, 4, v{KOFF}")
    a(f"v_add_u32 v{KOFF}, s18, v{KOFF}")
    a(f"v_lshlrev_b32 v{VOFF}, 4, v{LANE}")
    a(f"v_add_u32 v{VOFF}, s18, v{VOFF}")
    a(f"v_lshlrev_b32 v{QOFF}, 8, v{T1}")
    a(f"v_lshl_add_u32 v{QOFF}, v{T0}, 6, v{QOFF}")
    a(f"v_bfe_u32 v{T0}, v{LANE}, 2, 2")
    a(f"v_lshl_add_u32 v{QOFF}, v{T0}, 4, v{QOFF}")
    a("s_lshl_b32 s19, s16, 13")
    a("s_lshl_b32 s20, s14, 10")
    a("s_add_u32 s19, s19, s20")
    a(f"v_add_u32 v{QOFF}, s19, v{QOFF}")
    a("s_waitcnt lgkmcnt(0)")
    a(f"global_load_dwordx4 v[{QB}:{QB+3}], v{QOFF}, s[12:13]")
    for t in range(8):
        if t == 4:
            a(f"v_add_u32 v{KOFF}, 0x1000, v{KOFF}")
        a(f"global_load_dwordx4 v[{KR+4*t}:{KR+4*t+3}], v{KOFF}, s[4:5] offset:{(t&3)*1024}")
    for t in range(8):
        if t == 4:
            a(f"v_add_u32 v{VOFF}, 0x1000, v{VOFF}")
        a(f"global_load_dwordx4 v[{VR+4*t}:{VR+4*t+3}], v{VOFF}, s[6:7] offset:{(t&3)*1024}")
    for r in range(4):
        a(f"v_mov_b32 v{O0+r}, 0")
        a(f"v_mov_b32 v{O1+r}, 0")
    for r in range(4):
        a(f"v_mov_b32 v{X0+r}, 0")
    a(f"v_mov_b32 v{CSC}, {hex(f2u(SC))}")
    a("s_waitcnt vmcnt(8)")
    for t in range(8):
        a(f"v_mfma_f32_16x16x32_bf16 v[{DD+4*t}:{DD+4*t+3}], v[{KR+4*t}:{KR+4*t+3}], v[{QB}:{QB+3}], 0")
    nop(8)
    for t in range(8):
        idx, tau = t >> 2, t & 3
        for u in range(4):
            n = (4 * (tau - u)) % 16
            ctl = "quad_perm:[0,1,2,3]" if n == 0 else f"row_ror:{n}"
            if u == 0:
                a(f"v_mov_b32_dpp v{S0+idx}, v{DD+4*t+u} {ctl} row_mask:0xf bank_mask:{hex(1<<tau)}")
            else:
                a(f"v_add_f32_dpp v{S0+idx}, v{DD+4*t+u}, v{S0+idx} {ctl} row_mask:0xf bank_mask:{hex(1<<tau)}")
    a(f"v_max_f32 v{MX}, v{S0}, v{S0+1}")
    allreduce_banks("v_max_f32", MX)
    allreduce_rows("v_max_f32", MX, T0)
    a(f"v_mul_f32 v{MC}, v{MX}, v{CSC}")
    for idx in range(2):
        a(f"v_fma_f32 v{S0+idx}, v{S0+idx}, v{CSC}, -v{MC}")
        a(f"v_exp_f32 v{S0+idx}, v{S0+idx}")
    nop(1)
    a(f"v_add_f32 v{LS}, v{S0}, v{S0+1}")
    for idx in range(2):
        a(f"v_cvt_pk_bf16_f32 v{PL+idx}, v{S0+idx}, 0")
        a(f"v_cvt_pk_bf16_f32 v{PH+idx}, 0, v{S0+idx}")
    allreduce_banks("v_add_f32", LS)
    allreduce_rows("v_add_f32", LS, T0)
    a("s_waitcnt vmcnt(0)")
    for t in range(8):
        idx, tau = t >> 2, t & 3
        x = X0 + 2 * (t & 1)
        for (reg, bank, src) in ((x, 0, PL), (x, 1, PH), (x + 1, 2, PL), (x + 1, 3, PH)):
            n = (4 * (bank - tau)) % 16
            ctl = "quad_perm:[0,1,2,3]" if n == 0 else f"row_ror:{n}"
            a(f"v_mov_b32_dpp v{reg}, v{src+idx} {ctl} row_mask:0xf bank_mask:{hex(1<<bank)}")
        nop(2)
        a(f"v_mfma_f32_16x16x16_bf16 v[{O0}:{O0+3}], v[{VR+4*t}:{VR+4*t+1}], v[{x}:{x+1}], v[{O0}:{O0+3}]")
        a(f"v_mfma_f32_16x16x16_bf16 v[{O1}:{O1+3}], v[{VR+4*t+2}:{VR+4*t+3}], v[{x}:{x+1}], v[{O1}:{O1+3}]")
    nop(8)
    a(f"v_lshlrev_b32 v{T0}, 4, v{LANE}")
    a("s_lshl_b32 s19, s3, 11")
    a(f"v_add_u32 v{T0}, s19, v{T0}")
    a(f"ds_write_b128 v{T0}, v[{O0}:{O0+3}]")
    a(f"ds_write_b128 v{T0}, v[{O1}:{O1+3}] offset:1024")
    a(f"v_and_b32 v{T1}, 3, v{LANE}")
    a(f"v_lshlrev_b32 v{T1}, 5, v{T1}")
    a("s_lshl_b32 s19, s3, 2")
    a(f"v_add_u32 v{T2}, s19, v{T1}")
    a(f"ds_write_b32 v{T2}, v{MC} offset:8192")
    a(f"ds_write_b32 v{T2}, v{LS} offset:8208")
    a("s_waitcnt lgkmcnt(0)")
    a("s_barrier")
    a("s_cmp_ge_u32 s3, 2")
    a("s_cbranch_scc1 k2_done")
    a(f"v_lshlrev_b32 v{T0}, 4, v{LANE}")
    a("s_lshl_b32 s19, s3, 10")
    a(f"v_add_u32 v{T0}, s19, v{T0}")
    R = 8
    for w in range(4):
        a(f"ds_read_b128 v[{R+4*w}:{R+4*w+3}], v{T0} offset:{w*2048}")
    a(f"ds_read_b128 v[{R+16}:{R+19}], v{T1} offset:8192")
    a(f"ds_read_b128 v[{R+20}:{R+23}], v{T1} offset:8208")
    a("s_waitcnt lgkmcnt(0)")
    M, W, L = R + 24, R + 28, R + 32
    a(f"v_max3_f32 v{M}, v{R+16}, v{R+17}, v{R+18}")
    a(f"v_max_f32 v{M}, v{M}, v{R+19}")
    for w in range(4):
        a(f"v_sub_f32 v{W+w}, v{R+16+w}, v{M}")
        a(f"v_exp_f32 v{W+w}, v{W+w}")
    nop(1)
    a(f"v_mul_f32 v{L}, v{W}, v{R+20}")
    for w in range(1, 4):
        a(f"v_fmac_f32 v{L}, v{W+w}, v{R+20+w}")
    OO = R + 36
    for r in range(4):
        a(f"v_mul_f32 v{OO+r}, v{W}, v{R+r}")
        for w in range(1, 4):
            a(f"v_fmac_f32 v{OO+r}, v{W+w}, v{R+4*w+r}")
    a(f"v_rcp_f32 v{L+1}, v{L}")
    a(f"v_log_f32 v{L+2}, v{L}")
    nop(1)
    for r in range(4):
        a(f"v_mul_f32 v{OO+r}, v{OO+r}, v{L+1}")
    G = R + 40
    a(f"v_cvt_pk_bf16_f32 v{G}, v{OO}, v{OO+1}")
    a(f"v_cvt_pk_bf16_f32 v{G+1}, v{OO+2}, v{OO+3}")
    a(f"v_add_f32 v{G+2}, v{M}, v{L+2}")
    a(f"v_mov_b32 v{G+3}, 0")
    a("s_lshl_b32 s18, s16, 3")
    a("s_add_u32 s18, s18, s14")
    a("s_lshl_b32 s18, s18, 3")
    a("s_add_u32 s18, s18, s17")
    a("s_lshl_b32 s18, s18, 1")
    a("s_add_u32 s18, s18, s3")
    a("s_lshl_b32 s18, s18, 10")
    a(f"s_add_u32 s18, s18, {WS_PART}")
    a(f"v_lshlrev_b32 v{T0}, 4, v{LANE}")
    a(f"v_add_u32 v{T0}, s18, v{T0}")
    a(f"global_store_dwordx4 v{T0}, v[{G}:{G+3}], s[12:13]")
    a("k2_done:")
    a("s_endpgm")
    return name

def k3():
    name = "k3_oproj_kernel"
    kernel_begin(a, name)
    a("s_cmp_ge_u32 s2, 256")
    a("s_cbranch_scc1 k3_done")
    a("s_load_dwordx2 s[4:5], s[0:1], 32")
    a("s_load_dwordx2 s[6:7], s[0:1], 64")
    a("s_load_dwordx2 s[12:13], s[0:1], 88")
    LANE, T0, T1, T2, WOFF, GOFF, HOFF = 1, 2, 3, 4, 5, 6, 7
    WR = 8
    WD = 24
    G0, G1 = 40, 44
    HV = 48
    M, W0, W1, WS_ = 52, 53, 54, 55
    OV = 56
    MA, MB = 60, 61
    X = 62
    D0, D1 = 68, 72
    SEL = 76
    a(f"v_lshrrev_b32 v{T0}, 6, v0")
    a(f"v_and_b32 v{LANE}, 63, v0")
    a(f"v_readfirstlane_b32 s3, v{T0}")
    a("s_and_b32 s14, s2, 3")
    a("s_lshr_b32 s15, s2, 2")
    a("s_lshr_b32 s16, s15, 1")
    a("s_and_b32 s17, s15, 1")
    a("s_lshl_b32 s18, s16, 7")
    a("s_lshl_b32 s19, s3, 5")
    a("s_add_u32 s18, s18, s19")
    a("s_lshl_b32 s19, s17, 2")
    a("s_add_u32 s18, s18, s19")
    a("s_lshl_b32 s18, s18, 10")
    a("s_lshl_b32 s19, s14, 8")
    a("s_add_u32 s18, s18, s19")
    a(f"v_lshrrev_b32 v{T0}, 4, v{LANE}")
    a(f"v_lshlrev_b32 v{WOFF}, 10, v{T0}")
    a(f"v_and_b32 v{T1}, 15, v{LANE}")
    a(f"v_lshl_add_u32 v{WOFF}, v{T1}, 4, v{WOFF}")
    a(f"v_add_u32 v{T2}, s18, v{WOFF}")
    a(f"v_and_b32 v{T1}, 3, v{LANE}")
    a(f"v_lshlrev_b32 v{GOFF}, 17, v{T1}")
    a(f"v_bfe_u32 v{T1}, v{LANE}, 2, 2")
    a(f"v_lshl_add_u32 v{GOFF}, v{T1}, 11, v{GOFF}")
    a(f"v_lshl_add_u32 v{GOFF}, v{T0}, 6, v{GOFF}")
    a("s_lshr_b32 s19, s16, 2")
    a("s_lshl_b32 s19, s19, 14")
    a("s_lshl_b32 s20, s17, 10")
    a("s_add_u32 s19, s19, s20")
    a("s_lshl_b32 s20, s3, 8")
    a("s_add_u32 s19, s19, s20")
    a("s_and_b32 s20, s16, 3")
    a("s_lshl_b32 s20, s20, 4")
    a("s_add_u32 s19, s19, s20")
    a(f"s_add_u32 s19, s19, {WS_PART}")
    a(f"v_add_u32 v{GOFF}, s19, v{GOFF}")
    a(f"v_bfe_u32 v{T1}, v{LANE}, 2, 2")
    a(f"v_mov_b32 v{MA}, 0")
    a(f"v_mov_b32 v{MB}, 0")
    a(f"v_mov_b32 v{SEL}, 0xffff")
    a(f"v_mov_b32 v{SEL+1}, 0xffff0000")
    a(f"v_cmp_eq_u32 vcc, 0, v{T1}"); nop(2); a(f"v_cndmask_b32 v{MA}, v{MA}, v{SEL}, vcc")
    a(f"v_cmp_eq_u32 vcc, 1, v{T1}"); nop(2); a(f"v_cndmask_b32 v{MA}, v{MA}, v{SEL+1}, vcc")
    a(f"v_cmp_eq_u32 vcc, 2, v{T1}"); nop(2); a(f"v_cndmask_b32 v{MB}, v{MB}, v{SEL}, vcc")
    a(f"v_cmp_eq_u32 vcc, 3, v{T1}"); nop(2); a(f"v_cndmask_b32 v{MB}, v{MB}, v{SEL+1}, vcc")
    a("s_waitcnt lgkmcnt(0)")
    a(f"global_load_dwordx4 v[{G0}:{G0+3}], v{GOFF}, s[12:13]")
    a(f"v_add_u32 v{GOFF}, 0x2000, v{GOFF}")
    a(f"global_load_dwordx4 v[{G1}:{G1+3}], v{GOFF}, s[12:13]")
    for st in range(4):
        a(f"global_load_dwordx4 v[{WR+4*st}:{WR+4*st+3}], v{T2}, s[4:5]")
        if st < 3:
            a(f"v_add_u32 v{T2}, 0x2000, v{T2}")
    for r in range(4):
        a(f"v_mov_b32 v{D0+r}, 0")
        a(f"v_mov_b32 v{D1+r}, 0")
    a("s_cmp_lt_u32 s15, 36")
    a("s_cbranch_scc1 k3_noffn_ld")
    a("s_sub_u32 s21, s15, 36")
    a("s_lshl_b32 s21, s21, 6")
    a("s_lshl_b32 s22, s3, 4")
    a("s_add_u32 s21, s21, s22")
    a("s_lshl_b32 s22, s21, 10")
    a("s_lshl_b32 s23, s14, 8")
    a("s_add_u32 s22, s22, s23")
    a(f"v_lshrrev_b32 v{T0}, 4, v{LANE}")
    a(f"v_lshlrev_b32 v{T0}, 12, v{T0}")
    a(f"v_and_b32 v{T1}, 15, v{LANE}")
    a(f"v_lshl_add_u32 v{T0}, v{T1}, 4, v{T0}")
    a(f"v_add_u32 v{T0}, s22, v{T0}")
    for st in range(4):
        a(f"global_load_dwordx4 v[{WD+4*st}:{WD+4*st+3}], v{T0}, s[6:7] offset:{st*1024}")
    a(f"v_and_b32 v{T1}, 3, v{LANE}")
    a("s_mov_b32 s23, 3584")
    a(f"v_mul_lo_u32 v{HOFF}, v{T1}, s23")
    a(f"v_lshrrev_b32 v{T0}, 4, v{LANE}")
    a(f"v_lshl_add_u32 v{HOFF}, v{T0}, 3, v{HOFF}")
    a("s_lshl_b32 s21, s21, 1")
    a(f"s_add_u32 s21, s21, {WS_H}")
    a(f"v_add_u32 v{HOFF}, s21, v{HOFF}")
    a(f"global_load_dwordx2 v[{HV}:{HV+1}], v{HOFF}, s[12:13]")
    a("k3_noffn_ld:")
    a("s_waitcnt vmcnt(0)")
    a(f"v_max_f32 v{M}, v{G0+2}, v{G1+2}")
    allreduce_banks("v_max_f32", M)
    a(f"v_sub_f32 v{W0}, v{G0+2}, v{M}")
    a(f"v_sub_f32 v{W1}, v{G1+2}, v{M}")
    a(f"v_exp_f32 v{W0}, v{W0}")
    a(f"v_exp_f32 v{W1}, v{W1}")
    nop(1)
    a(f"v_add_f32 v{WS_}, v{W0}, v{W1}")
    for r in range(4):
        ga, gb = G0 + (r >> 1), G1 + (r >> 1)
        if r & 1:
            a(f"v_and_b32 v{T0}, 0xffff0000, v{ga}")
            a(f"v_and_b32 v{T1}, 0xffff0000, v{gb}")
        else:
            a(f"v_lshlrev_b32 v{T0}, 16, v{ga}")
            a(f"v_lshlrev_b32 v{T1}, 16, v{gb}")
        a(f"v_mul_f32 v{OV+r}, v{T0}, v{W0}")
        a(f"v_fmac_f32 v{OV+r}, v{T1}, v{W1}")
    allreduce_banks("v_add_f32", WS_)
    for r in range(4):
        allreduce_banks("v_add_f32", OV + r)
    a(f"v_rcp_f32 v{WS_}, v{WS_}")
    nop(1)
    for st in range(4):
        x = X + 2 * (st & 1)
        a(f"v_mul_f32 v{T0}, v{OV+st}, v{WS_}")
        a(f"v_cvt_pk_bf16_f32 v{T0}, v{T0}, v{T0}")
        a(f"v_and_b32 v{x}, v{T0}, v{MA}")
        a(f"v_and_b32 v{x+1}, v{T0}, v{MB}")
        nop(2)
        a(f"v_mfma_f32_16x16x16_bf16 v[{D0}:{D0+3}], v[{WR+4*st}:{WR+4*st+1}], v[{x}:{x+1}], v[{D0}:{D0+3}]")
        a(f"v_mfma_f32_16x16x16_bf16 v[{D1}:{D1+3}], v[{WR+4*st+2}:{WR+4*st+3}], v[{x}:{x+1}], v[{D1}:{D1+3}]")
    a("s_cmp_lt_u32 s15, 36")
    a("s_cbranch_scc1 k3_noffn")
    for st in range(4):
        x = X + 2 * (st & 1)
        hv = HV + (st >> 1)
        if st & 1:
            a(f"v_lshrrev_b32 v{T0}, 16, v{hv}")
        else:
            a(f"v_and_b32 v{T0}, 0xffff, v{hv}")
        a(f"v_lshl_or_b32 v{T0}, v{T0}, 16, v{T0}")
        a(f"v_and_b32 v{x}, v{T0}, v{MA}")
        a(f"v_and_b32 v{x+1}, v{T0}, v{MB}")
        nop(2)
        a(f"v_mfma_f32_16x16x16_bf16 v[{D0}:{D0+3}], v[{WD+4*st}:{WD+4*st+1}], v[{x}:{x+1}], v[{D0}:{D0+3}]")
        a(f"v_mfma_f32_16x16x16_bf16 v[{D1}:{D1+3}], v[{WD+4*st+2}:{WD+4*st+3}], v[{x}:{x+1}], v[{D1}:{D1+3}]")
    a("k3_noffn:")
    nop(8)
    a(f"v_lshlrev_b32 v{T0}, 4, v{LANE}")
    a("s_lshl_b32 s19, s3, 11")
    a(f"v_add_u32 v{T0}, s19, v{T0}")
    a(f"ds_write_b128 v{T0}, v[{D0}:{D0+3}]")
    a(f"ds_write_b128 v{T0}, v[{D1}:{D1+3}] offset:1024")
    a("s_waitcnt lgkmcnt(0)")
    a("s_barrier")
    a("s_cmp_ge_u32 s3, 2")
    a("s_cbranch_scc1 k3_done")
    a(f"v_lshlrev_b32 v{T0}, 4, v{LANE}")
    a("s_lshl_b32 s19, s3, 10")
    a(f"v_add_u32 v{T1}, s19, v{T0}")
    R = 8
    for w in range(4):
        a(f"ds_read_b128 v[{R+4*w}:{R+4*w+3}], v{T1} offset:{w*2048}")
    a("s_waitcnt lgkmcnt(0)")
    for r in range(4):
        a(f"v_add_f32 v{R+r}, v{R+r}, v{R+4+r}")
        a(f"v_add_f32 v{R+8+r}, v{R+8+r}, v{R+12+r}")
        a(f"v_add_f32 v{R+r}, v{R+r}, v{R+8+r}")
    a("s_lshl_b32 s18, s15, 2")
    a("s_add_u32 s18, s18, s14")
    a("s_lshl_b32 s18, s18, 1")
    a("s_add_u32 s18, s18, s3")
    a("s_lshl_b32 s18, s18, 10")
    a(f"s_add_u32 s18, s18, {WS_OP}")
    a(f"v_add_u32 v{T0}, s18, v{T0}")
    a(f"global_store_dwordx4 v{T0}, v[{R}:{R+3}], s[12:13]")
    a("k3_done:")
    a("s_endpgm")
    return name

def k4():
    name = "k4_final_kernel"
    kernel_begin(a, name)
    a("s_cmp_ge_u32 s2, 64")
    a("s_cbranch_scc1 k4_done")
    a("s_load_dwordx2 s[4:5], s[0:1], 0")
    a("s_load_dwordx2 s[6:7], s[0:1], 72")
    a("s_load_dwordx2 s[12:13], s[0:1], 88")
    T0, T1, T2, OFF = 2, 3, 4, 5
    A, B = 8, 12
    a("s_and_b32 s14, s2, 3")
    a("s_bfe_u32 s15, s2, 0x20002")
    a("s_lshr_b32 s16, s2, 4")
    a(f"v_and_b32 v{T0}, 31, v0")
    a(f"v_lshlrev_b32 v{OFF}, 13, v{T0}")
    a(f"v_lshrrev_b32 v{T1}, 7, v0")
    a(f"v_lshl_add_u32 v{OFF}, v{T1}, 10, v{OFF}")
    a(f"v_bfe_u32 v{T2}, v0, 5, 2")
    a(f"v_lshl_add_u32 v{OFF}, v{T2}, 6, v{OFF}")
    a("s_lshl_b32 s17, s15, 11")
    a("s_lshl_b32 s18, s16, 8")
    a("s_add_u32 s17, s17, s18")
    a("s_lshl_b32 s18, s14, 4")
    a("s_add_u32 s17, s17, s18")
    a(f"s_add_u32 s17, s17, {WS_OP}")
    a(f"v_add_u32 v{OFF}, s17, v{OFF}")
    a("s_waitcnt lgkmcnt(0)")
    a(f"global_load_dwordx4 v[{A}:{A+3}], v{OFF}, s[12:13]")
    a(f"v_add_u32 v{OFF}, 0x40000, v{OFF}")
    a(f"global_load_dwordx4 v[{B}:{B+3}], v{OFF}, s[12:13]")
    a(f"v_and_b32 v{T0}, 3, v0")
    a(f"v_lshlrev_b32 v{T0}, 3, v{T0}")
    a(f"v_lshl_add_u32 v{T0}, v{T1}, 2, v{T0}")
    a(f"v_add_u32 v{T0}, v{T0}, v{T2}")
    a("s_lshl_b32 s18, s15, 7")
    a("s_lshl_b32 s19, s16, 5")
    a("s_add_u32 s18, s18, s19")
    a("s_lshl_b32 s19, s14, 9")
    a("s_add_u32 s18, s18, s19")
    a(f"v_add_u32 v{T0}, s18, v{T0}")
    a(f"v_lshlrev_b32 v{T0}, 1, v{T0}")
    a(f"global_load_ushort v16, v{T0}, s[4:5]")
    a("s_waitcnt vmcnt(0)")
    for r in range(4):
        a(f"v_add_f32 v{A+r}, v{A+r}, v{B+r}")
    for n in (1, 2, 4, 8):
        nop(2)
        for r in range(4):
            a(f"v_add_f32_dpp v{A+r}, v{A+r}, v{A+r} row_ror:{n} row_mask:0xf bank_mask:0xf")
    for r in range(4):
        a(f"v_mov_b32 v{B+r}, v{A+r}")
    nop(2)
    for r in range(4):
        a(f"v_permlane16_swap_b32 v{B+r}, v{A+r}")
    nop(1)
    for r in range(4):
        a(f"v_add_f32 v{A+r}, v{A+r}, v{B+r}")
    a(f"v_and_b32 v17, 3, v0")
    a(f"v_cmp_eq_u32 vcc, 1, v17"); nop(2); a(f"v_cndmask_b32 v{A}, v{A}, v{A+1}, vcc")
    a(f"v_cmp_eq_u32 vcc, 2, v17"); nop(2); a(f"v_cndmask_b32 v{A}, v{A}, v{A+2}, vcc")
    a(f"v_cmp_eq_u32 vcc, 3, v17"); nop(2); a(f"v_cndmask_b32 v{A}, v{A}, v{A+3}, vcc")
    a(f"v_lshlrev_b32 v16, 16, v16")
    a(f"v_add_f32 v{A}, v{A}, v16")
    a(f"v_cvt_pk_bf16_f32 v{A}, v{A}, v{A}")
    a(f"v_and_b32 v17, 28, v0")
    a(f"v_cmp_eq_u32 vcc, 0, v17")
    a("s_and_saveexec_b64 s[16:17], vcc")
    a(f"global_store_short v{T0}, v{A}, s[6:7]")
    a("k4_done:")
    a("s_endpgm")
    return name

names = [k1(), k2(), k3(), k4()]
for n, vg in zip(names, (96, 136, 80, 24)):
    kernel_desc(a, n, vgpr=vg, sgpr=40)
open(out, "w").write(a.text())
```
